```python
import torch

def _softmax(x, axis=-1):
    return torch.softmax(x, dim=axis)
def _gelu(x):
    return torch.nn.functional.gelu(x, approximate="tanh")
def _silu(x):
    return torch.nn.functional.silu(x)
def _sigmoid(x):
    return torch.sigmoid(x)
def _layernorm(x, axis=-1, eps=1e-5):
    m = x.mean(dim=axis, keepdim=True)
    v = x.var(dim=axis, keepdim=True, unbiased=False)
    return (x - m) / torch.sqrt(v + eps)
def _scatter_add(tgt, idx, src, axis=0):
    return tgt.clone().index_add_(axis, idx, src)
def _segment_sum(src, seg, n):
    out = torch.zeros((n,) + src.shape[1:], dtype=src.dtype)
    return out.index_add_(0, seg, src)
def _pad(x, pw):
    flat = tuple(v for pair in reversed(pw) for v in pair)
    return torch.nn.functional.pad(x, flat)

kernel_name = 'standalone__sequential_behavior_din__recsys'

def setup_inputs():

    _w = (lambda a: (lambda t: t.to(torch.bfloat16) if t.is_floating_point() else t)(torch.as_tensor(a)))
    B, L, D = 4096, 200, 32
    H = D
    return {
        "target": _w((lambda *s: torch.randn(*s, dtype=torch.bfloat16) * 1.6)(B, D)),
        "hist": _w((lambda *s: torch.randn(*s, dtype=torch.bfloat16) * 1.6)(B, L, D)),
        "mask": _w((lambda lo, hi, *s: torch.randint(lo, hi, s))(0, 2, B, L).to(float)),
        "w1": _w((lambda *s: torch.randn(*s, dtype=torch.bfloat16) * 1.6)(4 * D, H) * (4 * D) ** -0.5),
        "b1": _w((lambda *s: torch.randn(*s, dtype=torch.bfloat16) * 6.4)(H) * 0.1),
        "w2": _w((lambda *s: torch.randn(*s, dtype=torch.bfloat16) * 0.05)(H, 1) * H ** -0.5),
        "b2": _w((lambda *s: torch.randn(*s, dtype=torch.bfloat16) * 0.4)(1) * 0.1),
    }

def reference(target, hist, mask, w1, b1, w2, b2):
    L = hist.shape[1]
    tgt = (lambda x, n, axis: torch.repeat_interleave(x, n, dim=axis))(target[:, None, :], L, axis=1)
    feat = torch.concatenate([hist, tgt, hist - tgt, hist * tgt], axis=-1)
    h = _sigmoid(feat @ w1 + b1)
    scores = (h @ w2 + b2)[..., 0] * mask
    return torch.einsum('bl,bld->bd', scores, hist)
```

```python
NAME = "standalone__sequential_behavior_din__recsys"

def v(i, n=1):
    return "v%d" % i if n == 1 else "v[%d:%d]" % (i, i+n-1)
def s(i, n=1):
    return "s%d" % i if n == 1 else "s[%d:%d]" % (i, i+n-1)

class Asm:
    def __init__(self):
        self.out = []
    def e(self, x):
        self.out.append("  " + x)
    def raw(self, x):
        self.out.append(x)
    def label(self, x):
        self.out.append(x + ":")
    def header(self, grid, block, lds, name=NAME):
        ref = open('cdna_kernels/%s.s.ref' % NAME).read().split('\n')
        for l in ref:
            if l.startswith('; Kernarg') or l.startswith(';   offset'):
                self.raw(l)
        self.raw("; @launch grid=(%d,1,1) block=(%d,1,1) lds=%d" % (grid, block, lds))
        self.raw('.amdgcn_target "amdgcn-amd-amdhsa--gfx950"')
        self.raw(".text")
        self.raw(".globl %s_kernel" % name)
        self.raw(".p2align 8")
        self.raw(".type %s_kernel,@function" % name)
        self.raw("%s_kernel:" % name)
    def footer(self, nvgpr, nsgpr, name=NAME, accum=None):
        if accum is None:
            accum = (nvgpr + 3)//4*4
        self.raw('.section .rodata,"a"')
        self.raw(".p2align 6")
        self.raw(".amdhsa_kernel %s_kernel" % name)
        self.raw("  .amdhsa_next_free_vgpr %d" % nvgpr)
        self.raw("  .amdhsa_next_free_sgpr %d" % nsgpr)
        self.raw("  .amdhsa_accum_offset %d" % accum)
        self.raw("  .amdhsa_group_segment_fixed_size 0")
        self.raw("  .amdhsa_kernarg_size 80")
        self.raw("  .amdhsa_user_sgpr_count 2")
        self.raw("  .amdhsa_user_sgpr_kernarg_segment_ptr 1")
        self.raw("  .amdhsa_system_sgpr_workgroup_id_x 1")
        self.raw("  .amdhsa_float_denorm_mode_32 3")
        self.raw(".end_amdhsa_kernel")
    def text(self):
        return "\n".join(self.out) + "\n"
```

```python
import sys
from asmlib import *

WPG = 4
NWG = 4096 // WPG
NT = 13
a = Asm(); e = a.e
a.header(NWG, 64*WPG, 8192)

T0,T1,T2 = 1,2,3
vH = 4; vM = 56; P0,P1,X = 69,70,71
vA = 72; vBias = 80; vW2 = 88; vB2 = 92; vAcc = 96; vD = 104; vS = 120; vD2 = 124
NV = 128
srdH, srdM, srdT, srdW1, srdB1, srdW2, srdB2, srdO = 20, 24, 28, 32, 36, 40, 44, 48
sTmp = 52; sC = 56

e("s_cmp_ge_u32 s2, %d" % NWG)
e("s_cbranch_scc1 L_end")
e("s_load_dwordx16 s[4:19], s[0:1], 0")
e("v_lshrrev_b32 %s, 6, v0" % v(T0))
e("s_lshl_b32 %s, s2, %d" % (s(sTmp), {1:0,2:1,4:2,8:3,16:4}[WPG]))
e("v_readfirstlane_b32 s3, %s" % v(T0))
e("v_and_b32 %s, 15, v0" % v(T1))
e("v_bfe_u32 %s, v0, 4, 2" % v(T2))
e("s_add_u32 s3, s3, %s" % s(sTmp))
e("v_lshlrev_b32 %s, 6, %s" % (v(P0), v(T1)))
e("v_lshl_add_u32 %s, %s, 4, %s" % (v(P0), v(T2), v(P0)))
e("v_lshlrev_b32 %s, 1, %s" % (v(P1), v(T1)))
e("s_waitcnt lgkmcnt(0)")
def srd(dst, ptr, nbytes, mul=None):
    if mul is None:
        e("s_mov_b32 %s, %s" % (s(dst), s(ptr)))
        e("s_and_b32 %s, %s, 0xffff" % (s(dst+1), s(ptr+1)))
    else:
        e("s_mul_i32 %s, s3, %d" % (s(sTmp), mul))
        e("s_add_u32 %s, %s, %s" % (s(dst), s(ptr), s(sTmp)))
        e("s_addc_u32 %s, %s, 0" % (s(dst+1), s(ptr+1)))
        e("s_and_b32 %s, %s, 0xffff" % (s(dst+1), s(dst+1)))
    e("s_mov_b32 %s, %d" % (s(dst+2), nbytes))
    e("s_mov_b32 %s, 0x20000" % s(dst+3))
srd(srdW1, 10, 8192)
srd(srdT, 4, 64, 64)
srd(srdH, 6, 12800, 12800)
srd(srdM, 8, 400, 400)
srd(srdB1, 12, 64)
srd(srdW2, 14, 64)
srd(srdB2, 16, 2)
srd(srdO, 18, 64, 64)

tW = vD
tT = vS
tN = vD2
e("v_lshlrev_b32 %s, 5, v0" % v(T0))
e("buffer_load_dwordx4 %s, %s, %s, 0 offen" % (v(tW,4), v(T0), s(srdW1,4)))
e("buffer_load_dwordx4 %s, %s, %s, 0 offen offset:16" % (v(tW+4,4), v(T0), s(srdW1,4)))
e("v_lshlrev_b32 %s, 4, %s" % (v(X), v(T2)))
e("buffer_load_dwordx4 %s, %s, %s, 0 offen" % (v(tT,4), v(X), s(srdT,4)))
e("v_lshlrev_b32 %s, 3, %s" % (v(X), v(T2)))
e("buffer_load_dwordx2 %s, %s, %s, 0 offen" % (v(vAcc,2), v(X), s(srdB1,4)))
e("buffer_load_dwordx2 %s, %s, %s, 0 offen offset:32" % (v(vAcc+2,2), v(X), s(srdB1,4)))
e("buffer_load_dwordx2 %s, %s, %s, 0 offen" % (v(vW2,2), v(X), s(srdW2,4)))
e("buffer_load_dwordx2 %s, %s, %s, 0 offen offset:32" % (v(vW2+2,2), v(X), s(srdW2,4)))
e("v_mov_b32 %s, 0" % v(vB2))
e("v_mov_b32 %s, 0" % v(vB2+1))
e("buffer_load_short_d16_hi %s, %s, %s, 0 offen" % (v(vB2), v(vB2+1), s(srdB2,4)))
NPRE = 2+1+2+2+1
for t in range(NT):
    e("v_mov_b32 %s, 0" % v(vM+t))
e("s_mov_b32 %s, 4096" % s(sTmp))
e("s_mov_b32 %s, 8192" % s(sTmp+1))
e("s_mov_b32 %s, 12288" % s(sTmp+2))
for t in range(NT):
    so = ["0", s(sTmp), s(sTmp+1), s(sTmp+2)][t//4]
    e("buffer_load_dwordx4 %s, %s, %s, %s offen offset:%d" % (v(vH+4*t,4), v(P0), s(srdH,4), so, (t%4)*1024))
    e("buffer_load_short_d16_hi %s, %s, %s, 0 offen offset:%d" % (v(vM+t), v(P1), s(srdM,4), t*32))
NMAIN = 2*NT
vI = vD + 8; M0 = vD + 14; M1 = vD + 15
e("v_lshrrev_b32 %s, 2, %s" % (v(X), v(T1)))
e("v_cmp_eq_u32 vcc, %s, %s" % (v(X), v(T2)))
e("v_and_b32 %s, 1, %s" % (v(X), v(T1)))
e("v_lshlrev_b32 %s, 4, %s" % (v(X), v(X)))
e("v_mov_b32 %s, 0xffff" % v(M1))
e("v_lshlrev_b32 %s, %s, %s" % (v(M1), v(X), v(M1)))
e("v_cndmask_b32 %s, 0, %s, vcc" % (v(M1), v(M1)))
e("v_and_b32 %s, 2, %s" % (v(X), v(T1)))
e("v_cmp_eq_u32 vcc, 0, %s" % v(X))
e("s_mov_b32 %s, 0x3f803f80" % s(sTmp+3))
e("s_nop 0")
e("v_cndmask_b32 %s, 0, %s, vcc" % (v(M0), v(M1)))
e("v_sub_u32 %s, %s, %s" % (v(M1), v(M1), v(M0)))
e("v_and_b32 %s, %s, %s" % (v(vI), s(sTmp+3), v(M0)))
e("v_and_b32 %s, %s, %s" % (v(vI+1), s(sTmp+3), v(M1)))
e("v_mov_b32 %s, 0" % v(vI+2))
e("v_mov_b32 %s, 0" % v(vI+3))
e("v_mov_b32 %s, %s" % (v(vI+4), v(vI)))
e("v_mov_b32 %s, %s" % (v(vI+5), v(vI+1)))
e("v_lshrrev_b32 %s, 2, %s" % (v(X), v(T1)))
e("v_lshl_add_u32 %s, %s, 3, %s" % (v(X), v(T2), v(X)))
e("v_lshlrev_b32 %s, 6, %s" % (v(X), v(X)))
e("v_and_b32 %s, 3, %s" % (v(T1), v(T1)))
e("v_lshl_add_u32 %s, %s, 3, %s" % (v(T1), v(T1), v(X)))
e("s_waitcnt vmcnt(%d)" % (NMAIN + NPRE - 2))
e("ds_write_b128 %s, %s" % (v(T0), v(tW,4)))
e("ds_write_b128 %s, %s offset:16" % (v(T0), v(tW+4,4)))
vTr = T1
e("s_waitcnt vmcnt(%d)" % NMAIN)
for hh in range(2):
    e("v_lshlrev_b32 %s, 16, %s" % (v(vBias+4*hh+0), v(vAcc+2*hh)))
    e("v_and_b32 %s, 0xffff0000, %s" % (v(vBias+4*hh+1), v(vAcc+2*hh)))
    e("v_lshlrev_b32 %s, 16, %s" % (v(vBias+4*hh+2), v(vAcc+2*hh+1)))
    e("v_and_b32 %s, 0xffff0000, %s" % (v(vBias+4*hh+3), v(vAcc+2*hh+1)))
for p in range(4):
    e("v_xor_b32 %s, 0x80008000, %s" % (v(tN+p), v(tT+p)))
e("s_mov_b32 %s, 0xbfb8aa3b" % s(sC))
e("s_mov_b32 %s, 0xbfb8aa3b" % s(sC+1))
e("s_waitcnt lgkmcnt(0)")
e("s_barrier")
def trread(dst, m, hh):
    for q in range(2):
        e("ds_read_b64_tr_b16 %s, %s offset:%d" % (v(dst+2*q,2), v(vTr), (32*m + 4*q)*64 + hh*32))
Wb = [vAcc, vAcc+4]; Wc = [vD, vD+4]; Wd = [vA, vA+4]
trread(Wb[0], 1, 0); trread(Wc[0], 2, 0); trread(Wb[1], 1, 1); trread(Wc[1], 2, 1)
trread(Wd[0], 3, 0); trread(Wd[1], 3, 1)
e("s_waitcnt lgkmcnt(4)")
for hh in range(2):
    e("v_mfma_f32_16x16x32_bf16 %s, %s, %s, %s" % (v(vBias+4*hh,4), v(Wb[hh],4), v(tT,4), v(vBias+4*hh,4)))
for hh in range(2):
    e("v_mfma_f32_16x16x32_bf16 %s, %s, %s, %s" % (v(vBias+4*hh,4), v(Wc[hh],4), v(tN,4), v(vBias+4*hh,4)))
e("s_nop 7")
G = vS + 2
e("v_and_b32 %s, %s, %s" % (v(G+4), v(M0), v(tT+2)))
e("v_and_b32 %s, %s, %s" % (v(G+5), v(M1), v(tT+3)))
e("v_and_b32 %s, %s, %s" % (v(G+0), v(M0), v(tT+0)))
e("v_and_b32 %s, %s, %s" % (v(G+1), v(M1), v(tT+1)))
e("v_mov_b32 %s, 0" % v(G+2))
e("v_mov_b32 %s, 0" % v(G+3))
Wa = vAcc; E = [vAcc+4, vD+14]
for hh in range(2):
    trread(Wa, 0, hh)
    e("s_waitcnt lgkmcnt(0)")
    for T in range(2):
        e("v_mfma_f32_16x16x32_bf16 %s, %s, %s, 0" % (v(E[T],4), v(vI+2*T,4), v(Wa,4)))
    for T in range(2):
        e("v_mfma_f32_16x16x32_bf16 %s, %s, %s, %s" % (v(E[T],4), v(vI+2*T,4), v(Wc[hh],4), v(E[T],4)))
    for T in range(2):
        e("v_mfma_f32_16x16x32_bf16 %s, %s, %s, %s" % (v(E[T],4), v(G+2*T,4), v(Wd[hh],4), v(E[T],4)))
    e("s_nop 7")
    e("s_nop 3")
    for T in range(2):
        for p in range(2):
            e("v_pk_mul_f32 %s, %s, %s" % (v(E[T]+2*p,2), v(E[T]+2*p,2), s(sC,2)))
    for T in range(2):
        for p in range(2):
            e("v_cvt_pk_bf16_f32 %s, %s, %s" % (v(vA+4*hh+2*T+p), v(E[T]+2*p), v(E[T]+2*p+1)))
for p in range(4):
    e("v_pk_mul_f32 %s, %s, %s" % (v(vBias+2*p,2), v(vBias+2*p,2), s(sC,2)))
for r in range(1,4):
    e("v_mov_b32 %s, %s" % (v(vB2+r), v(vB2)))
for r in range(8):
    e("v_mov_b32 %s, 0" % v(vAcc+r))
def gemm1(t):
    d = vD + 8*(t&1)
    for hh in range(2):
        e("v_mfma_f32_16x16x32_bf16 %s, %s, %s, %s" % (v(d+4*hh,4), v(vA+4*hh,4), v(vH+4*t,4), v(vBias+4*hh,4)))
e("s_waitcnt vmcnt(%d)" % (NMAIN-2))
gemm1(0)
for t in range(NT):
    d = vD + 8*(t&1)
    if t+1 < NT:
        e("s_waitcnt vmcnt(%d)" % (NMAIN - 2*(t+2)))
        gemm1(t+1)
    else:
        e("s_nop 7")
    if t == 0: e("s_nop 7")
    for r in range(8): e("v_exp_f32 %s, %s" % (v(d+r), v(d+r)))
    for r in range(8): e("v_add_f32 %s, 1.0, %s" % (v(d+r), v(d+r)))
    for r in range(8): e("v_rcp_f32 %s, %s" % (v(d+r), v(d+r)))
    e("s_nop 0")
    for p in range(4): e("v_cvt_pk_bf16_f32 %s, %s, %s" % (v(vS+p), v(d+2*p), v(d+2*p+1)))
    e("s_nop 1")
    e("v_mfma_f32_16x16x32_bf16 %s, %s, %s, %s" % (v(vD2,4), v(vW2,4), v(vS,4), v(vB2,4)))
    e("s_nop 7")
    e("v_mul_f32 %s, %s, %s" % (v(X), v(vD2), v(vM+t)))
    e("v_cvt_pk_bf16_f32 %s, %s, 0" % (v(P0), v(X)))
    e("v_cvt_pk_bf16_f32 %s, 0, %s" % (v(P1), v(X)))
    for p in range(4):
        e("v_dot2_f32_bf16 %s, %s, %s, %s" % (v(vAcc+2*p), v(vH+4*t+p), v(P0), v(vAcc+2*p)))
        e("v_dot2_f32_bf16 %s, %s, %s, %s" % (v(vAcc+2*p+1), v(vH+4*t+p), v(P1), v(vAcc+2*p+1)))
e("s_nop 3")
for sh in ["row_ror:8", "row_ror:4", "row_ror:2", "row_ror:1"]:
    for r in range(8):
        e("v_add_f32_dpp %s, %s, %s %s row_mask:0xf bank_mask:0xf" % (v(vAcc+r), v(vAcc+r), v(vAcc+r), sh))
for p in range(4):
    e("v_cvt_pk_bf16_f32 %s, %s, %s" % (v(vS+p), v(vAcc+2*p), v(vAcc+2*p+1)))
e("v_and_b32 %s, 15, v0" % v(T1))
e("v_bfe_u32 %s, v0, 4, 2" % v(T2))
e("v_lshlrev_b32 %s, 4, %s" % (v(T2), v(T2)))
e("v_cmp_eq_u32 vcc, 0, %s" % v(T1))
e("s_and_saveexec_b64 s[4:5], vcc")
e("buffer_store_dwordx4 %s, %s, %s, 0 offen" % (v(vS,4), v(T2), s(srdO,4)))
a.label("L_end")
e("s_endpgm")
a.footer(NV, 64)
open(sys.argv[1], "w").write(a.text())
```

```python
import sys, re
src, dst, K, mode, NWG = sys.argv[1], sys.argv[2], int(sys.argv[3]), sys.argv[4], int(sys.argv[5])
lines = open(src).read().split('\n')
out = []
done = False
for i, l in enumerate(lines):
    if l.strip() == "s_cbranch_scc1 L_end" and not done:
        done = True
        out.append("  s_cbranch_scc1 L_end2")
        out.append("  s_memrealtime s[60:61]")
        out.append("  s_load_dwordx2 s[70:71], s[0:1], 64")
        out.append("  v_readfirstlane_b32 s69, v0")
        continue
    if ';MARK' in l and mode == 'mark':
        out.append("  s_memrealtime s[62:63]")
        out.append("  s_waitcnt lgkmcnt(0)")
        continue
    if l.strip() == "L_end:":
        out.append(l)
        out.append("  s_waitcnt vmcnt(0) lgkmcnt(0)")
        out.append("  s_barrier")
        if mode == 'end':
            out.append("  s_memrealtime s[62:63]")
        elif mode == 'start':
            out.append("  s_mov_b32 s62, s60")
        out.append("  s_waitcnt lgkmcnt(0)")
        out.append("  s_cmp_ge_u32 s69, 64")
        out.append("  s_cbranch_scc1 L_end2")
        out.append("  s_mov_b32 s72, s70")
        out.append("  s_and_b32 s73, s71, 0xffff")
        out.append("  s_mov_b32 s74, 256")
        out.append("  s_mov_b32 s75, 0x20000")
        out.append("  s_mov_b64 exec, 1")
        out.append("  s_not_b32 s64, s60")
        out.append("  v_mov_b32 v1, s64")
        out.append("  v_mov_b32 v2, s62")
        out.append("  v_mov_b32 v4, 0")
        out.append("  buffer_atomic_umax v1, v4, s[72:75], 0 offen")
        out.append("  buffer_atomic_umax v2, v4, s[72:75], 0 offen offset:4")
        out.append("  s_waitcnt vmcnt(0)")
        out.append("  v_mov_b32 v3, 1")
        out.append("  buffer_atomic_add v3, v4, s[72:75], 0 offen offset:8 sc0")
        out.append("  s_waitcnt vmcnt(0)")
        out.append("  v_readfirstlane_b32 s64, v3")
        out.append("  s_nop 3")
        out.append("  s_cmp_eq_u32 s64, %d" % (NWG-1))
        out.append("  s_cbranch_scc0 L_end2")
        out.append("  v_mov_b32 v1, 0")
        out.append("  v_mov_b32 v2, 0")
        out.append("  buffer_atomic_umax v1, v4, s[72:75], 0 offen sc0")
        out.append("  buffer_atomic_umax v2, v4, s[72:75], 0 offen offset:4 sc0")
        out.append("  s_waitcnt vmcnt(0)")
        out.append("  v_readfirstlane_b32 s64, v1")
        out.append("  v_readfirstlane_b32 s65, v2")
        out.append("  s_nop 3")
        out.append("  s_not_b32 s64, s64")
        out.append("  s_sub_u32 s64, s65, s64")
        out.append("  s_min_u32 s64, s64, 20000")
        out.append("  v_mov_b32 v1, s64")
        out.append("  buffer_store_dword v1, v4, s[72:75], 0 offen offset:12")
        out.append("  s_memrealtime s[66:67]")
        out.append("  s_waitcnt lgkmcnt(0)")
        out.append("  s_mul_i32 s65, s64, %d" % K)
        out.append("  s_add_u32 s65, s65, s66")
        out.append("L_spin:")
        out.append("  s_sleep 2")
        out.append("  s_memrealtime s[66:67]")
        out.append("  s_waitcnt lgkmcnt(0)")
        out.append("  s_sub_u32 s68, s66, s65")
        out.append("  s_cmp_lt_i32 s68, 0")
        out.append("  s_cbranch_scc1 L_spin")
        out.append("L_end2:")
        continue
    l = re.sub(r'\.amdhsa_next_free_sgpr \d+', '.amdhsa_next_free_sgpr 80', l)
    out.append(l)
open(dst, 'w').write('\n'.join(out))
```
